```python
import torch

def _softmax(x, axis=-1):
    return torch.softmax(x, dim=axis)
def _gelu(x):
    return torch.nn.functional.gelu(x, approximate="tanh")
def _silu(x):
    return torch.nn.functional.silu(x)
def _sigmoid(x):
    return torch.sigmoid(x)
def _layernorm(x, axis=-1, eps=1e-5):
    m = x.mean(dim=axis, keepdim=True)
    v = x.var(dim=axis, keepdim=True, unbiased=False)
    return (x - m) / torch.sqrt(v + eps)
def _scatter_add(tgt, idx, src, axis=0):
    return tgt.clone().index_add_(axis, idx, src)
def _segment_sum(src, seg, n):
    out = torch.zeros((n,) + src.shape[1:], dtype=src.dtype)
    return out.index_add_(0, seg, src)
def _pad(x, pw):
    flat = tuple(v for pair in reversed(pw) for v in pair)
    return torch.nn.functional.pad(x, flat)

kernel_name = 'sequential_preLN__ssm_conv_h3__glu_gated_reglu__prompt'

def setup_inputs():

    _w = (lambda a: (lambda t: t.to(torch.bfloat16) if t.is_floating_point() else t)(torch.as_tensor(a)))
    def _A_setup():
        B, S, D = 1, 2048, 512
        ks = 4
        return {
            "q": _w((lambda *s: torch.randn(*s, dtype=torch.bfloat16) * 0.05)(B, S, D)),
            "k": _w((lambda *s: torch.randn(*s, dtype=torch.bfloat16) * 0.2)(B, S, D)),
            "v": _w((lambda *s: torch.randn(*s, dtype=torch.bfloat16) * 0.2)(B, S, D)),
            "shift_k": _w((lambda *s: torch.randn(*s, dtype=torch.bfloat16) * 0.2)(D, ks) * 0.5),
            "ssm_k": _w((lambda *s: torch.randn(*s, dtype=torch.bfloat16) * 0.4)(D, S) * (1.0 / S ** 0.5)),
            "ssm_D": _w((lambda *s: torch.randn(*s, dtype=torch.bfloat16) * 0.2)(D)),
        }
    _A_in = _A_setup()

    def _B_setup():
        B, S, D, F = 1, 2048, 512, 1792
        return {
            "x": _w((lambda *s: torch.randn(*s, dtype=torch.bfloat16) * 0.05)(B, S, D)),
            "W_gate": _w((lambda *s: torch.randn(*s, dtype=torch.bfloat16) * 0.2)(D, F) * (2.0 / D) ** 0.5),
            "W_up": _w((lambda *s: torch.randn(*s, dtype=torch.bfloat16) * 0.2)(D, F) * (2.0 / D) ** 0.5),
            "W_down": _w((lambda *s: torch.randn(*s, dtype=torch.bfloat16) * 0.2)(F, D) * (1.0 / F) ** 0.5),
        }
    _B_in = _B_setup()

    return {
        "A_q": _A_in["q"],
        "A_k": _A_in["k"],
        "A_v": _A_in["v"],
        "A_shift_k": _A_in["shift_k"],
        "A_ssm_k": _A_in["ssm_k"],
        "A_ssm_D": _A_in["ssm_D"],
        "B_x": _B_in["x"],
        "B_W_gate": _B_in["W_gate"],
        "B_W_up": _B_in["W_up"],
        "B_W_down": _B_in["W_down"],
    }

def reference(A_q, A_k, A_v, A_shift_k, A_ssm_k, A_ssm_D, B_x, B_W_gate, B_W_up, B_W_down):
    def _A_ref(q, k, v, shift_k, ssm_k, ssm_D):
        B, S, D = q.shape
        ks = shift_k.shape[-1]
        k_pad = _pad(k, ((0, 0), (ks - 1, 0), (0, 0)))
        k_shift = torch.zeros_like(k)
        for t in range(ks):
            k_shift = k_shift + k_pad[:, t:t + S, :] * shift_k[:, ks - 1 - t][None, None, :]
        kv = k_shift * v
        L = 2 * S
        kv_pad = _pad(kv, ((0, 0), (0, S), (0, 0)))
        kf_pad = _pad(ssm_k, ((0, 0), (0, S)))
        kv_f = (lambda x, axes=(-2,-1): torch.fft.rfft2(x.float(), dim=axes))(kv_pad[:, None, :, :], axes=(1, 2))
        kf_f = (lambda x, axes=(-2,-1): torch.fft.rfft2(x.float(), dim=axes))(kf_pad[:, None, :], axes=(1, 2))
        kf_f = (lambda x, *d: x.permute(*d))(kf_f, 1, 2, 0)
        y_f = kv_f * kf_f[None, :, :, :]
        y = (lambda x, s, axes=(-2,-1): torch.fft.irfft2(x, s=s, dim=axes).to(torch.bfloat16))(y_f, (1, L), axes=(1, 2))[:, 0, :S, :]
        y = y + kv * ssm_D[None, None, :]
        return q * y

    def _B_ref(x, W_gate, W_up, W_down):
        gate = torch.einsum("bsd,df->bsf", x, W_gate)
        up = torch.einsum("bsd,df->bsf", x, W_up)
        gate = gate * (lambda x, dt: x.to(dt))(gate > 0, gate.dtype)
        h = gate * up
        return torch.einsum("bsf,fd->bsd", h, W_down)

    x = A_q
    h = x + _A_ref(_layernorm(x, axis=-1), A_k, A_v, A_shift_k, A_ssm_k, A_ssm_D)
    h2 = h + _B_ref(_layernorm(h, axis=-1), B_W_gate, B_W_up, B_W_down)
    return h2
```

```python
import sys
NAME = "sequential_preLN__ssm_conv_h3__glu_gated_reglu__prompt"
MB = 1 << 20
WS_KVT = 0 * MB
WS_Y2 = 2 * MB
WS_H = 4 * MB
WS_N2 = 6 * MB
WS_WG = 8 * MB
WS_WU = 10 * MB
WS_WD = 12 * MB
WS_HH = 16 * MB

class A:
    def __init__(s):
        s.l = []
        s.n = 0
    def __call__(s, x):
        for ln in x.strip().split("\n"):
            s.l.append("    " + ln.strip())
    def lab(s, x): s.l.append(x + ":")
    def newlab(s, p="L"):
        s.n += 1
        return f"{p}_{s.n}"
    def srd(s, d, p, nbytes, off=0):
        s(f"s_add_u32 s{d}, s{p}, {off}")
        s(f"s_addc_u32 s{d+1}, s{p+1}, 0")
        s(f"s_mov_b32 s{d+2}, {nbytes}")
        s(f"s_mov_b32 s{d+3}, 0x20000")
    def rnd2(s, a, b, t):
        s(f"v_cvt_pk_bf16_f32 v{t}, v{a}, v{b}")
        s(f"v_lshlrev_b32 v{a}, 16, v{t}")
        s(f"v_and_b32 v{b}, 0xffff0000, v{t}")
    def unpk(s, lo, hi, src):
        s(f"v_lshlrev_b32 v{lo}, 16, v{src}")
        s(f"v_and_b32 v{hi}, 0xffff0000, v{src}")

def header(a, name):
    a.l.append(f".globl {name}")
    a.l.append(".p2align 8")
    a.l.append(f".type {name},@function")
    a.l.append(f"{name}:")

def desc(name, vgpr, lds=0, accum=None):
    acc = accum if accum else min(256, (vgpr + 3) // 4 * 4)
    return f""".p2align 6
.amdhsa_kernel {name}
  .amdhsa_next_free_vgpr {vgpr}
  .amdhsa_next_free_sgpr 102
  .amdhsa_accum_offset {acc}
  .amdhsa_group_segment_fixed_size 0
  .amdhsa_kernarg_size 104
  .amdhsa_user_sgpr_count 2
  .amdhsa_user_sgpr_kernarg_segment_ptr 1
  .amdhsa_system_sgpr_workgroup_id_x 1
.end_amdhsa_kernel
"""

def k_kv(a):
    header(a, "kv_kernel")
    end = "kv_end"
    a(f"s_cmp_ge_u32 s2, 256\ns_cbranch_scc1 {end}")
    a("s_load_dwordx4 s[4:7], s[0:1], 8\ns_load_dwordx2 s[8:9], s[0:1], 24\ns_load_dwordx2 s[10:11], s[0:1], 96\ns_waitcnt lgkmcnt(0)")
    a.srd(12, 4, 2 * MB); a.srd(16, 6, 2 * MB); a.srd(20, 8, 4096); a.srd(24, 10, 2 * MB, WS_KVT)
    a("s_lshr_b32 s28, s2, 3\ns_and_b32 s29, s2, 7")
    a("v_and_b32 v1, 7, v0\nv_lshrrev_b32 v2, 3, v0")
    a("s_lshl_b32 s30, s28, 16\ns_lshl_b32 s31, s29, 7\ns_add_u32 s30, s30, s31")
    a("v_lshlrev_b32 v3, 11, v2\nv_lshl_add_u32 v3, v1, 4, v3\nv_add_u32 v3, s30, v3")
    for j in range(5):
        a(f"v_add_u32 v{4+j}, {(j-3)*1024}, v3")
    for j in range(5):
        a(f"buffer_load_dwordx4 v[{10+4*j}:{13+4*j}], v{4+j}, s[12:15], 0 offen")
    a("buffer_load_dwordx4 v[30:33], v3, s[16:19], 0 offen")
    a("buffer_load_dwordx4 v[34:37], v3, s[16:19], 0 offen offset:1024")
    a("s_lshl_b32 s31, s29, 9\nv_lshlrev_b32 v9, 6, v1\nv_add_u32 v9, s31, v9")
    for j in range(4):
        a(f"buffer_load_dwordx4 v[{38+4*j}:{41+4*j}], v9, s[20:23], 0 offen offset:{16*j}")
    a("v_mul_u32_u24 v54, 1152, v1\nv_lshlrev_b32 v55, 2, v2\nv_sub_u32 v54, v54, v55\nv_add_u32 v54, 124, v54")
    a("s_waitcnt vmcnt(0)")
    for i in range(4):
        a.unpk(60, 61, 38 + 4 * i); a.unpk(62, 63, 39 + 4 * i)
        a.unpk(64, 65, 40 + 4 * i); a.unpk(66, 67, 41 + 4 * i)
        for j in range(5):
            a.unpk(70 + j, 75 + j, 10 + 4 * j + i)
        a.unpk(80, 82, 30 + i); a.unpk(81, 83, 34 + i)
        for rr in range(2):
            a(f"v_mul_f32 v84, v{70+rr}, v63\nv_mul_f32 v85, v{75+rr}, v67")
            a.rnd2(84, 85, 88)
            for t in range(1, 4):
                a(f"v_mul_f32 v86, v{70+rr+t}, v{63-t}\nv_mul_f32 v87, v{75+rr+t}, v{67-t}")
                a.rnd2(86, 87, 88)
                a("v_add_f32 v84, v84, v86\nv_add_f32 v85, v85, v87")
                a.rnd2(84, 85, 88)
            a(f"v_mul_f32 v{90+rr}, v84, v{80+rr}\nv_mul_f32 v{92+rr}, v85, v{82+rr}")
        a("v_cvt_pk_bf16_f32 v94, v91, v90\nv_cvt_pk_bf16_f32 v95, v93, v92")
        a(f"ds_write_b32 v54, v94 offset:{(2*i)*144}\nds_write_b32 v54, v95 offset:{(2*i+1)*144}")
    a("s_waitcnt lgkmcnt(0)\ns_barrier")
    a("v_lshrrev_b32 v1, 3, v0\nv_and_b32 v2, 7, v0")
    a("v_mul_u32_u24 v3, 144, v1\nv_lshl_add_u32 v3, v2, 4, v3")
    a("ds_read_b128 v[10:13], v3\nds_read_b128 v[14:17], v3 offset:4608")
    a("s_lshl_b32 s30, s29, 18\ns_lshl_b32 s31, s28, 7\ns_sub_u32 s30, s30, s31\ns_add_u32 s30, s30, 3968")
    a("v_lshlrev_b32 v4, 12, v1\nv_lshl_add_u32 v4, v2, 4, v4\nv_add_u32 v4, s30, v4\nv_add_u32 v5, 0x20000, v4")
    a("s_waitcnt lgkmcnt(0)")
    a("buffer_store_dwordx4 v[10:13], v4, s[24:27], 0 offen\nbuffer_store_dwordx4 v[14:17], v5, s[24:27], 0 offen")
    a.lab(end)
    a("s_endpgm")
    return desc("kv_kernel", 96), 9216

def k_repack(a):
    header(a, "repack_kernel")
    end = "rp_end"
    a(f"s_cmp_ge_u32 s2, 672\ns_cbranch_scc1 {end}")
    a("s_load_dwordx4 s[4:7], s[0:1], 56\ns_load_dwordx2 s[8:9], s[0:1], 72\ns_load_dwordx2 s[10:11], s[0:1], 96\ns_waitcnt lgkmcnt(0)")
    a("v_lshrrev_b32 v1, 3, v0\nv_and_b32 v2, 7, v0")
    def body(pre, sp, rowbytes, nks, wsoff, ntb_cnt):
        a.srd(12, sp, 512 * 1792 * 2)
        a.srd(24, 10, 2 * MB, wsoff)
        a(f"s_mul_i32 s30, s28, {64*rowbytes}\ns_lshl_b32 s31, s29, 7\ns_add_u32 s30, s30, s31")
        a(f"v_mul_u32_u24 v3, {rowbytes}, v1\nv_lshl_add_u32 v3, v2, 4, v3\nv_add_u32 v3, s30, v3")
        a(f"buffer_load_dwordx4 v[10:13], v3, s[12:15], 0 offen")
        a(f"v_add_u32 v4, {32*rowbytes}, v3\nbuffer_load_dwordx4 v[14:17], v4, s[12:15], 0 offen")
        a("v_mul_u32_u24 v5, 1152, v2\nv_lshl_add_u32 v5, v1, 1, v5")
        a("s_waitcnt vmcnt(0)")
        for half in range(2):
            for e in range(8):
                r = 10 + 4 * half + e // 2
                op = "ds_write_b16" if e % 2 == 0 else "ds_write_b16_d16_hi"
                a(f"{op} v5, v{r} offset:{e*144 + half*64}")
        a("s_waitcnt lgkmcnt(0)\ns_barrier")
        a("v_and_b32 v6, 63, v0\nv_lshrrev_b32 v7, 6, v0")
        a("v_and_b32 v8, 15, v6\nv_lshrrev_b32 v9, 4, v6")
        a("v_lshl_add_u32 v8, v7, 4, v8\nv_mul_u32_u24 v8, 144, v8\nv_lshl_add_u32 v8, v9, 4, v8")
        a("ds_read_b128 v[10:13], v8\nds_read_b128 v[14:17], v8 offset:64")
        a(f"s_lshl_b32 s31, s29, 2\ns_mul_i32 s31, s31, {nks}\ns_lshl_b32 s30, s28, 1\ns_add_u32 s30, s30, s31\ns_lshl_b32 s30, s30, 10")
        a(f"v_mul_u32_u24 v9, {nks*1024}, v7\nv_lshl_add_u32 v9, v6, 4, v9\nv_add_u32 v9, s30, v9")
        a("s_waitcnt lgkmcnt(0)")
        a("buffer_store_dwordx4 v[10:13], v9, s[24:27], 0 offen\nbuffer_store_dwordx4 v[14:17], v9, s[24:27], 0 offen offset:1024")
        a(f"s_branch {end}")
    a("s_cmp_ge_u32 s2, 448\ns_cbranch_scc1 rp_d\ns_cmp_ge_u32 s2, 224\ns_cbranch_scc1 rp_u")
    a("s_mul_i32 s28, s2, 2341\ns_lshr_b32 s28, s28, 16\ns_mul_i32 s29, s28, 28\ns_sub_u32 s29, s2, s29")
    body("g", 4, 3584, 16, WS_WG, 28)
    a.lab("rp_u")
    a("s_sub_u32 s3, s2, 224\ns_mul_i32 s28, s3, 2341\ns_lshr_b32 s28, s28, 16\ns_mul_i32 s29, s28, 28\ns_sub_u32 s29, s3, s29")
    body("u", 6, 3584, 16, WS_WU, 28)
    a.lab("rp_d")
    a("s_sub_u32 s3, s2, 448\ns_lshr_b32 s28, s3, 3\ns_and_b32 s29, s3, 7")
    body("d", 8, 1024, 56, WS_WD, 8)
    a.lab(end)
    a("s_endpgm")
    return desc("repack_kernel", 24), 9216

def k_conv(a):
    header(a, "conv_kernel")
    end = "cv_end"
    a(f"s_cmp_ge_u32 s2, 128\ns_cbranch_scc1 {end}")
    a("s_load_dwordx4 s[4:7], s[0:1], 32\ns_load_dwordx2 s[10:11], s[0:1], 96\ns_waitcnt lgkmcnt(0)")
    a("v_lshrrev_b32 v1, 6, v0\nv_and_b32 v2, 63, v0\ns_nop 0\nv_readfirstlane_b32 s28, v1")
    a("s_nop 3\ns_lshl_b32 s29, s2, 2\ns_add_u32 s29, s29, s28")
    a("s_lshl_b32 s30, s29, 12")
    a("s_add_u32 s12, s4, s30\ns_addc_u32 s13, s5, 0\ns_mov_b32 s14, 4096\ns_mov_b32 s15, 0x20000")
    a.srd(16, 10, 2 * MB, WS_KVT)
    a.srd(24, 10, 2 * MB, WS_Y2)
    a.srd(20, 6, 1024)
    a("s_lshl_b32 s31, s29, 1\nv_mov_b32 v3, s31\nbuffer_load_ushort v200, v3, s[20:23], 0 offen")
    a("s_mul_i32 s32, s28, 4608")
    a("v_lshlrev_b32 v3, 4, v2\nv_add_u32 v4, s30, v3\nv_add_u32 v5, s32, v3")
    for i in range(4):
        a(f"buffer_load_dwordx4 v[{10+4*i}:{13+4*i}], v4, s[16:19], 0 offen offset:{1024*i}")
    a("v_mov_b32 v26, 0\nv_mov_b32 v27, 0\nv_mov_b32 v28, 0\nv_mov_b32 v29, 0")
    a("s_waitcnt vmcnt(0)")
    for i in range(4):
        a(f"ds_write_b128 v5, v[{10+4*i}:{13+4*i}] offset:{1024*i}")
    a("v_cmp_gt_u32 vcc, 32, v2\ns_and_saveexec_b64 s[34:35], vcc\nds_write_b128 v5, v[26:29] offset:4096\ns_mov_b64 exec, s[34:35]")
    a("v_and_b32 v6, 15, v2\nv_lshrrev_b32 v7, 4, v2")
    a("v_lshrrev_b32 v8, 1, v7\nv_and_b32 v9, 1, v7")
    a("v_lshlrev_b32 v10, 4, v8\nv_lshlrev_b32 v11, 3, v9\nv_sub_u32 v10, v10, v11\nv_add_u32 v10, v10, v6\nv_add_u32 v10, -7, v10")
    a("v_and_b32 v11, 1, v10\nv_lshlrev_b32 v11, 4, v11")
    a("v_and_b32 v12, -2, v10\nv_lshlrev_b32 v12, 1, v12")
    a("v_add_u32 v13, 64, v12")
    a("v_lshlrev_b32 v14, 4, v6\nv_sub_u32 v14, 2040, v14\nv_lshl_add_u32 v14, v8, 4, v14\nv_lshlrev_b32 v15, 3, v9\nv_sub_u32 v14, v14, v15")
    a("v_lshlrev_b32 v14, 1, v14\nv_add_u32 v14, s32, v14\nv_add_u32 v14, -3584, v14")
    ACC = 16
    AF = 48
    BF = 80
    RAW = 144
    for c in range(8):
        for r in range(4):
            a(f"v_mov_b32 v{ACC+4*c+r}, 0")
    def issue(b, st):
        for aa in range(8):
            p = 8 * aa + b
            if p == 0:
                for r in range(5):
                    a(f"v_add_u32 v{AF+r}, {4*r}, v12")
                for r in range(5):
                    a(f"buffer_load_dword v{RAW+r}, v{AF+r}, s[12:15], 0 offen")
            else:
                a(f"buffer_load_dwordx4 v[{RAW+6*aa}:{RAW+6*aa+3}], v13, s[12:15], 0 offen offset:{(p-1)*64}")
                a(f"buffer_load_dword v{RAW+6*aa+4}, v13, s[12:15], 0 offen offset:{(p-1)*64+16}")
        for m in range(8):
            w = 8 * m - b
            a(f"ds_read_b128 v[{BF+32*st+4*m}:{BF+32*st+4*m+3}], v14 offset:{(56-w)*64}")
    a("s_waitcnt lgkmcnt(0)")
    issue(0, 0)
    for b in range(8):
        st = b & 1
        a("s_waitcnt vmcnt(0)")
        for aa in range(8):
            for r in range(4):
                a(f"v_alignbit_b32 v{AF+4*aa+r}, v{RAW+6*aa+r+1}, v{RAW+6*aa+r}, v11")
        a("s_waitcnt lgkmcnt(0)")
        if b < 7:
            issue(b + 1, st ^ 1)
        else:
            a("s_nop 1")
        for c in range(8):
            for aa in range(c + 1):
                m = c - aa
                a(f"v_mfma_f32_16x16x32_bf16 v[{ACC+4*c}:{ACC+4*c+3}], v[{AF+4*aa}:{AF+4*aa+3}], v[{BF+32*st+4*m}:{BF+32*st+4*m+3}], v[{ACC+4*c}:{ACC+4*c+3}]")
    a("s_nop 7\ns_nop 1")
    a("v_lshlrev_b32 v200, 16, v200")
    a("v_lshlrev_b32 v6, 4, v6\nv_lshl_add_u32 v6, v7, 2, v6")
    a("v_lshlrev_b32 v8, 1, v6\nv_sub_u32 v8, 4088, v8\nv_add_u32 v8, s32, v8\nv_add_u32 v8, -3584, v8")
    a("v_lshlrev_b32 v9, 3, v6\nv_lshl_add_u32 v9, v1, 1, v9\nv_add_u32 v9, 18432, v9")
    for c in range(8):
        a(f"ds_read_b64 v[198:199], v8 offset:{(7-c)*512}")
        a("s_waitcnt lgkmcnt(0)")
        a("v_and_b32 v192, 0xffff0000, v199\nv_lshlrev_b32 v193, 16, v199\nv_and_b32 v194, 0xffff0000, v198\nv_lshlrev_b32 v195, 16, v198")
        for r in range(4):
            a(f"v_mul_f32 v{192+r}, v{192+r}, v200")
        a.rnd2(192, 193, 196); a.rnd2(194, 195, 196)
        a.rnd2(ACC + 4 * c, ACC + 4 * c + 1, 196); a.rnd2(ACC + 4 * c + 2, ACC + 4 * c + 3, 196)
        for r in range(4):
            a(f"v_add_f32 v{192+r}, v{192+r}, v{ACC+4*c+r}")
        a("v_cvt_pk_bf16_f32 v196, v192, v193\nv_cvt_pk_bf16_f32 v197, v194, v195")
        a(f"ds_write_b16 v9, v196 offset:{c*2048}\nds_write_b16_d16_hi v9, v196 offset:{c*2048+8}")
        a(f"ds_write_b16 v9, v197 offset:{c*2048+16}\nds_write_b16_d16_hi v9, v197 offset:{c*2048+24}")
    a("s_waitcnt lgkmcnt(0)\ns_barrier")
    a("v_lshlrev_b32 v3, 3, v0\nv_lshlrev_b32 v4, 10, v0\ns_lshl_b32 s30, s2, 3\nv_add_u32 v4, s30, v4")
    for i in range(8):
        a(f"ds_read_b64 v[{10+2*i}:{11+2*i}], v3 offset:{18432+2048*i}")
    a("s_waitcnt lgkmcnt(0)")
    for i in range(8):
        a(f"v_add_u32 v5, {i*262144}, v4\nbuffer_store_dwordx2 v[{10+2*i}:{11+2*i}], v5, s[24:27], 0 offen")
    a.lab(end)
    a("s_endpgm")
    return desc("conv_kernel", 208), 18432 + 16384

def k_ln(a):
    header(a, "ln_kernel")
    end = "ln_end"
    a(f"s_cmp_ge_u32 s2, 128\ns_cbranch_scc1 {end}")
    a("s_load_dwordx2 s[4:5], s[0:1], 0\ns_load_dwordx2 s[10:11], s[0:1], 96\ns_waitcnt lgkmcnt(0)")
    a.srd(12, 4, 2 * MB); a.srd(16, 10, 2 * MB, WS_Y2); a.srd(20, 10, 2 * MB, WS_H); a.srd(24, 10, 2 * MB, WS_N2)
    a("v_lshrrev_b32 v1, 4, v0\nv_and_b32 v2, 15, v0\ns_lshl_b32 s28, s2, 14")
    a("v_lshlrev_b32 v3, 10, v1\nv_lshl_add_u32 v3, v2, 4, v3\nv_add_u32 v3, s28, v3")
    for j in range(4):
        a(f"buffer_load_dwordx4 v[{4+4*j}:{7+4*j}], v3, s[12:15], 0 offen offset:{256*j}")
        a(f"buffer_load_dwordx4 v[{20+4*j}:{23+4*j}], v3, s[16:19], 0 offen offset:{256*j}")
    a("s_waitcnt vmcnt(0)")
    X = 40
    for i in range(16):
        a.unpk(X + 2 * i, X + 2 * i + 1, 4 + i)
    def reduce16(r, t):
        for m in (1, 2, 4, 8):
            a(f"ds_swizzle_b32 v{t}, v{r} offset:{(m<<10)|0x1f}\ns_waitcnt lgkmcnt(0)\nv_add_f32 v{r}, v{r}, v{t}")
    def ln(src, dst):
        a(f"v_add_f32 v36, v{src}, v{src+1}")
        for i in range(2, 32):
            a(f"v_add_f32 v36, v36, v{src+i}")
        reduce16(36, 37)
        a("v_mul_f32 v36, 0x3b000000, v36")
        a(f"v_sub_f32 v37, v{src}, v36\nv_mul_f32 v38, v37, v37")
        for i in range(1, 32):
            a(f"v_sub_f32 v37, v{src+i}, v36\nv_fmac_f32 v38, v37, v37")
        reduce16(38, 37)
        a("v_mul_f32 v38, 0x3b000000, v38")
        a.rnd2(36, 38, 37)
        a("v_add_f32 v38, 0x3727c5ac, v38\nv_mov_b32 v39, 0")
        a.rnd2(38, 39, 37)
        a("v_sqrt_f32 v38, v38\ns_nop 0")
        a.rnd2(38, 39, 37)
        a("v_rcp_f32 v38, v38\ns_nop 0")
        for i in range(0, 32, 2):
            a(f"v_sub_f32 v{dst+i}, v{src+i}, v36\nv_sub_f32 v{dst+i+1}, v{src+i+1}, v36")
            a.rnd2(dst + i, dst + i + 1, 37)
            a(f"v_mul_f32 v{dst+i}, v{dst+i}, v38\nv_mul_f32 v{dst+i+1}, v{dst+i+1}, v38")
            a.rnd2(dst + i, dst + i + 1, 37)
    Q = 72
    ln(X, Q)
    H = 104
    for i in range(16):
        a.unpk(H + 2 * i, H + 2 * i + 1, 20 + i)
        a(f"v_mul_f32 v{H+2*i}, v{H+2*i}, v{Q+2*i}\nv_mul_f32 v{H+2*i+1}, v{H+2*i+1}, v{Q+2*i+1}")
        a.rnd2(H + 2 * i, H + 2 * i + 1, 37)
        a(f"v_add_f32 v{H+2*i}, v{H+2*i}, v{X+2*i}\nv_add_f32 v{H+2*i+1}, v{H+2*i+1}, v{X+2*i+1}")
        a(f"v_cvt_pk_bf16_f32 v{4+i}, v{H+2*i}, v{H+2*i+1}")
        a.unpk(H + 2 * i, H + 2 * i + 1, 4 + i)
    for j in range(4):
        a(f"buffer_store_dwordx4 v[{4+4*j}:{7+4*j}], v3, s[20:23], 0 offen offset:{256*j}")
    ln(H, Q)
    for i in range(16):
        a(f"v_cvt_pk_bf16_f32 v{20+i}, v{Q+2*i}, v{Q+2*i+1}")
    for j in range(4):
        a(f"buffer_store_dwordx4 v[{20+4*j}:{23+4*j}], v3, s[24:27], 0 offen offset:{256*j}")
    a.lab(end)
    a("s_endpgm")
    return desc("ln_kernel", 136), 0

def k_g1(a):
    header(a, "g1_kernel")
    end = "g1_end"
    a(f"s_cmp_ge_u32 s2, 224\ns_cbranch_scc1 {end}")
    a("s_load_dwordx2 s[10:11], s[0:1], 96\ns_waitcnt lgkmcnt(0)")
    a.srd(12, 10, 2 * MB, WS_N2); a.srd(16, 10, 2 * MB, WS_WG); a.srd(20, 10, 2 * MB, WS_WU); a.srd(24, 10, 8 * MB, WS_HH)
    a("s_and_b32 s28, s2, 15\ns_lshr_b32 s29, s2, 4")
    a("v_lshrrev_b32 v1, 6, v0\nv_and_b32 v2, 63, v0\nv_and_b32 v3, 15, v2\nv_lshrrev_b32 v4, 4, v2")
    a("v_lshrrev_b32 v5, 1, v1\nv_and_b32 v6, 1, v1")
    a("v_lshl_add_u32 v7, v5, 6, v3\nv_lshlrev_b32 v7, 10, v7\nv_lshl_add_u32 v7, v4, 4, v7\ns_lshl_b32 s30, s28, 17\nv_add_u32 v7, s30, v7")
    a("v_lshlrev_b32 v8, 16, v6\nv_lshl_add_u32 v8, v2, 4, v8\ns_lshl_b32 s30, s29, 17\nv_add_u32 v8, s30, v8")
    ACC = 16; FA = 144; FB = 160
    for r in range(128):
        a(f"v_mov_b32 v{ACC+r}, 0")
    def issue(ks, st):
        o = 48 * st
        a(f"s_mov_b32 s31, {ks*1024}")
        for i in range(4):
            a(f"buffer_load_dwordx4 v[{FA+o+4*i}:{FA+o+4*i+3}], v7, s[12:15], 0 offen offset:{ks*64}" if i == 0 else
              f"buffer_load_dwordx4 v[{FA+o+4*i}:{FA+o+4*i+3}], v{9+i}, s[12:15], 0 offen offset:{ks*64}")
        for j in range(4):
            a(f"buffer_load_dwordx4 v[{FB+o+4*j}:{FB+o+4*j+3}], v{12+j if j else 8}, s[16:19], s31 offen")
        for j in range(4):
            a(f"buffer_load_dwordx4 v[{FB+o+16+4*j}:{FB+o+16+4*j+3}], v{12+j if j else 8}, s[20:23], s31 offen")
    for i in range(1, 4):
        a(f"v_add_u32 v{9+i}, {i*16384}, v7")
    for j in range(1, 4):
        a(f"v_add_u32 v{12+j}, {j*16384}, v8")
    issue(0, 0)
    for ks in range(16):
        st = ks & 1
        if ks < 15:
            issue(ks + 1, st ^ 1)
            a("s_waitcnt vmcnt(12)")
        else:
            a("s_waitcnt vmcnt(0)")
        o = 48 * st
        for i in range(4):
            for j in range(8):
                t = ACC + 4 * (8 * i + j)
                a(f"v_mfma_f32_16x16x32_bf16 v[{t}:{t+3}], v[{FB+o+4*j}:{FB+o+4*j+3}], v[{FA+o+4*i}:{FA+o+4*i+3}], v[{t}:{t+3}]")
    a("s_nop 7\ns_nop 1")
    a("v_lshl_add_u32 v7, v5, 6, v3\ns_lshl_b32 s30, s28, 7\nv_add_u32 v7, s30, v7\nv_mul_u32_u24 v7, 3584, v7")
    a("v_lshlrev_b32 v8, 7, v6\nv_lshl_add_u32 v8, v4, 3, v8\ns_lshl_b32 s30, s29, 8\nv_add_u32 v8, s30, v8\nv_add_u32 v7, v7, v8")
    for i in range(4):
        for j in range(4):
            g = ACC + 4 * (8 * i + j); u = g + 16
            a.rnd2(g, g + 1, 9); a.rnd2(g + 2, g + 3, 9); a.rnd2(u, u + 1, 9); a.rnd2(u + 2, u + 3, 9)
            for r in range(4):
                a(f"v_max_f32 v{g+r}, 0, v{g+r}\nv_mul_f32 v{g+r}, v{g+r}, v{u+r}")
            a(f"v_cvt_pk_bf16_f32 v{u}, v{g}, v{g+1}\nv_cvt_pk_bf16_f32 v{u+1}, v{g+2}, v{g+3}")
            a(f"buffer_store_dwordx2 v[{u}:{u+1}], v7, s[24:27], 0 offen offset:{j*32}", )
        if i < 3:
            a(f"v_add_u32 v7, {16*3584}, v7")
    a.lab(end)
    a("s_endpgm")
    return desc("g1_kernel", 240), 0

def k_g2(a):
    header(a, "g2_kernel")
    end = "g2_end"
    a(f"s_cmp_ge_u32 s2, 256\ns_cbranch_scc1 {end}")
    a("s_load_dwordx2 s[8:9], s[0:1], 80\ns_load_dwordx2 s[10:11], s[0:1], 96\ns_waitcnt lgkmcnt(0)")
    a.srd(12, 10, 8 * MB, WS_HH); a.srd(16, 10, 2 * MB, WS_WD); a.srd(20, 10, 2 * MB, WS_H); a.srd(24, 8, 2 * MB)
    a("s_and_b32 s28, s2, 31\ns_lshr_b32 s29, s2, 5")
    a("v_lshrrev_b32 v1, 6, v0\nv_and_b32 v2, 63, v0\nv_and_b32 v3, 15, v2\nv_lshrrev_b32 v4, 4, v2")
    a("v_lshrrev_b32 v5, 1, v1\nv_and_b32 v6, 1, v1")
    a("v_lshl_add_u32 v7, v5, 5, v3\ns_lshl_b32 s30, s28, 6\nv_add_u32 v7, s30, v7\nv_mul_u32_u24 v7, 3584, v7\nv_lshl_add_u32 v7, v4, 4, v7")
    a(f"v_add_u32 v9, {16*3584}, v7")
    a(f"v_mul_u32_u24 v8, {2*56*1024}, v6\nv_lshl_add_u32 v8, v2, 4, v8\ns_mul_i32 s30, s29, {4*56*1024}\nv_add_u32 v8, s30, v8\nv_add_u32 v10, {56*1024}, v8")
    ACC = 16; F = 32
    for r in range(16):
        a(f"v_mov_b32 v{ACC+r}, 0")
    def issue(st):
        o = F + 16 * st
        a(f"buffer_load_dwordx4 v[{o}:{o+3}], v7, s[12:15], s31 offen\nbuffer_load_dwordx4 v[{o+4}:{o+7}], v9, s[12:15], s31 offen")
        a(f"buffer_load_dwordx4 v[{o+8}:{o+11}], v8, s[16:19], s32 offen\nbuffer_load_dwordx4 v[{o+12}:{o+15}], v10, s[16:19], s32 offen")
        a("s_add_u32 s31, s31, 64\ns_add_u32 s32, s32, 1024")
    def mm(st):
        o = F + 16 * st
        for i in range(2):
            for j in range(2):
                t = ACC + 4 * (2 * i + j)
                a(f"v_mfma_f32_16x16x32_bf16 v[{t}:{t+3}], v[{o+8+4*j}:{o+11+4*j}], v[{o+4*i}:{o+3+4*i}], v[{t}:{t+3}]")
    a("s_mov_b32 s31, 0\ns_mov_b32 s32, 0\ns_mov_b32 s33, 0")
    issue(0)
    a.lab("g2_loop")
    issue(1)
    a("s_waitcnt vmcnt(4)")
    mm(0)
    issue(0)
    a("s_waitcnt vmcnt(4)")
    mm(1)
    a("s_add_u32 s33, s33, 1\ns_cmp_lt_u32 s33, 28\ns_cbranch_scc1 g2_loop")
    a("s_waitcnt vmcnt(0)\ns_nop 7\ns_nop 1\ns_mov_b32 s34, 0\ns_mov_b32 s35, 16384")
    a("v_lshl_add_u32 v7, v5, 5, v3\ns_lshl_b32 s30, s28, 6\nv_add_u32 v7, s30, v7\nv_lshlrev_b32 v7, 10, v7")
    a("v_lshlrev_b32 v8, 6, v6\nv_lshl_add_u32 v8, v4, 3, v8\ns_lshl_b32 s30, s29, 7\nv_add_u32 v8, s30, v8\nv_add_u32 v7, v7, v8")
    for i in range(2):
        for j in range(2):
            a(f"buffer_load_dwordx2 v[{40+4*i+2*j}:{41+4*i+2*j}], v7, s[20:23], s{34+i} offen offset:{j*32}")
    a("s_waitcnt vmcnt(0)")
    for i in range(2):
        for j in range(2):
            t = ACC + 4 * (2 * i + j); hr = 40 + 4 * i + 2 * j
            a.rnd2(t, t + 1, 9); a.rnd2(t + 2, t + 3, 9)
            a.unpk(50, 51, hr); a.unpk(52, 53, hr + 1)
            for r in range(4):
                a(f"v_add_f32 v{t+r}, v{t+r}, v{50+r}")
            a(f"v_cvt_pk_bf16_f32 v{hr}, v{t}, v{t+1}\nv_cvt_pk_bf16_f32 v{hr+1}, v{t+2}, v{t+3}")
            a(f"buffer_store_dwordx2 v[{hr}:{hr+1}], v7, s[24:27], s{34+i} offen offset:{j*32}")
    a.lab(end)
    a("s_endpgm")
    return desc("g2_kernel", 64), 0

def main():
    a = A()
    ks = [("kv_kernel", 256, k_kv), ("repack_kernel", 672, k_repack), ("conv_kernel", 128, k_conv),
          ("ln_kernel", 128, k_ln), ("g1_kernel", 224, k_g1), ("g2_kernel", 256, k_g2)]
    descs = []; heads = []
    for nm, grid, fn in ks:
        d, lds = fn(a)
        descs.append(d)
        heads.append(f"; @launch kernel={nm} grid=({grid},1,1) block=(256,1,1) lds={lds}")
    src = "\n".join(heads) + '\n.amdgcn_target "amdgcn-amd-amdhsa--gfx950"\n.text\n' + "\n".join(a.l) + '\n.section .rodata,"a"\n' + "".join(descs)
    open(sys.argv[1] if len(sys.argv) > 1 else f"cdna_kernels/{NAME}.s", "w").write(src)
main()
```

```python
import sys
NAME = "sequential_preLN__ssm_conv_h3__glu_gated_reglu__prompt"
MB = 1 << 20
WS_KVT = 0 * MB
WS_Y2 = 2 * MB
WS_H = 4 * MB
WS_N2 = 6 * MB
WS_WG = 8 * MB
WS_WU = 10 * MB
WS_WD = 12 * MB
WS_HH = 16 * MB

class A:
    def __init__(s):
        s.l = []
        s.n = 0
    def __call__(s, x):
        for ln in x.strip().split("\n"):
            s.l.append("    " + ln.strip())
    def lab(s, x): s.l.append(x + ":")
    def newlab(s, p="L"):
        s.n += 1
        return f"{p}_{s.n}"
    def srd(s, d, p, nbytes, off=0):
        s(f"s_add_u32 s{d}, s{p}, {off}")
        s(f"s_addc_u32 s{d+1}, s{p+1}, 0")
        s(f"s_mov_b32 s{d+2}, {nbytes}")
        s(f"s_mov_b32 s{d+3}, 0x20000")
    def rnd2(s, a, b, t):
        s(f"v_cvt_pk_bf16_f32 v{t}, v{a}, v{b}")
        s(f"v_lshlrev_b32 v{a}, 16, v{t}")
        s(f"v_and_b32 v{b}, 0xffff0000, v{t}")
    def unpk(s, lo, hi, src):
        s(f"v_lshlrev_b32 v{lo}, 16, v{src}")
        s(f"v_and_b32 v{hi}, 0xffff0000, v{src}")

def header(a, name):
    a.l.append(f".globl {name}")
    a.l.append(".p2align 8")
    a.l.append(f".type {name},@function")
    a.l.append(f"{name}:")

def desc(name, vgpr, lds=0, accum=None):
    acc = accum if accum else min(256, (vgpr + 3) // 4 * 4)
    return f""".p2align 6
.amdhsa_kernel {name}
  .amdhsa_next_free_vgpr {vgpr}
  .amdhsa_next_free_sgpr 102
  .amdhsa_accum_offset {acc}
  .amdhsa_group_segment_fixed_size 0
  .amdhsa_kernarg_size 104
  .amdhsa_user_sgpr_count 2
  .amdhsa_user_sgpr_kernarg_segment_ptr 1
  .amdhsa_system_sgpr_workgroup_id_x 1
.end_amdhsa_kernel
"""

def k_kv(a):
    header(a, "kv_kernel")
    end = "kv_end"
    a(f"s_cmp_ge_u32 s2, 256\ns_cbranch_scc1 {end}")
    a("s_load_dwordx4 s[4:7], s[0:1], 8\ns_load_dwordx2 s[8:9], s[0:1], 24\ns_load_dwordx2 s[10:11], s[0:1], 96\ns_waitcnt lgkmcnt(0)")
    a.srd(12, 4, 2 * MB); a.srd(16, 6, 2 * MB); a.srd(20, 8, 4096); a.srd(24, 10, 2 * MB, WS_KVT)
    a("s_lshr_b32 s28, s2, 3\ns_and_b32 s29, s2, 7")
    a("v_and_b32 v1, 7, v0\nv_lshrrev_b32 v2, 3, v0")
    a("s_lshl_b32 s30, s28, 16\ns_lshl_b32 s31, s29, 7\ns_add_u32 s30, s30, s31")
    a("v_lshlrev_b32 v3, 11, v2\nv_lshl_add_u32 v3, v1, 4, v3\nv_add_u32 v3, s30, v3")
    for j in range(5):
        a(f"v_add_u32 v{4+j}, {(j-3)*1024}, v3")
    for j in range(5):
        a(f"buffer_load_dwordx4 v[{10+4*j}:{13+4*j}], v{4+j}, s[12:15], 0 offen")
    a("buffer_load_dwordx4 v[30:33], v3, s[16:19], 0 offen")
    a("buffer_load_dwordx4 v[34:37], v3, s[16:19], 0 offen offset:1024")
    a("s_lshl_b32 s31, s29, 9\nv_lshlrev_b32 v9, 6, v1\nv_add_u32 v9, s31, v9")
    for j in range(4):
        a(f"buffer_load_dwordx4 v[{38+4*j}:{41+4*j}], v9, s[20:23], 0 offen offset:{16*j}")
    a("v_mul_u32_u24 v54, 1152, v1\nv_lshlrev_b32 v55, 2, v2\nv_sub_u32 v54, v54, v55\nv_add_u32 v54, 124, v54")
    a("s_waitcnt vmcnt(0)")
    for i in range(4):
        a.unpk(60, 61, 38 + 4 * i); a.unpk(62, 63, 39 + 4 * i)
        a.unpk(64, 65, 40 + 4 * i); a.unpk(66, 67, 41 + 4 * i)
        for j in range(5):
            a.unpk(70 + j, 75 + j, 10 + 4 * j + i)
        a.unpk(80, 82, 30 + i); a.unpk(81, 83, 34 + i)
        for rr in range(2):
            a(f"v_mul_f32 v84, v{70+rr}, v63\nv_mul_f32 v85, v{75+rr}, v67")
            a.rnd2(84, 85, 88)
            for t in range(1, 4):
                a(f"v_mul_f32 v86, v{70+rr+t}, v{63-t}\nv_mul_f32 v87, v{75+rr+t}, v{67-t}")
                a.rnd2(86, 87, 88)
                a("v_add_f32 v84, v84, v86\nv_add_f32 v85, v85, v87")
                a.rnd2(84, 85, 88)
            a(f"v_mul_f32 v{90+rr}, v84, v{80+rr}\nv_mul_f32 v{92+rr}, v85, v{82+rr}")
        a("v_cvt_pk_bf16_f32 v94, v91, v90\nv_cvt_pk_bf16_f32 v95, v93, v92")
        a(f"ds_write_b32 v54, v94 offset:{(2*i)*144}\nds_write_b32 v54, v95 offset:{(2*i+1)*144}")
    a("s_waitcnt lgkmcnt(0)\ns_barrier")
    a("v_lshrrev_b32 v1, 3, v0\nv_and_b32 v2, 7, v0")
    a("v_mul_u32_u24 v3, 144, v1\nv_lshl_add_u32 v3, v2, 4, v3")
    a("ds_read_b128 v[10:13], v3\nds_read_b128 v[14:17], v3 offset:4608")
    a("s_lshl_b32 s30, s29, 18\ns_lshl_b32 s31, s28, 7\ns_sub_u32 s30, s30, s31\ns_add_u32 s30, s30, 3968")
    a("v_lshlrev_b32 v4, 12, v1\nv_lshl_add_u32 v4, v2, 4, v4\nv_add_u32 v4, s30, v4\nv_add_u32 v5, 0x20000, v4")
    a("s_waitcnt lgkmcnt(0)")
    a("buffer_store_dwordx4 v[10:13], v4, s[24:27], 0 offen\nbuffer_store_dwordx4 v[14:17], v5, s[24:27], 0 offen")
    a.lab(end)
    a("s_endpgm")
    return desc("kv_kernel", 96), 9216

def k_repack(a):
    a.lab("rp_entry")
    end = "rp_end"
    a(f"s_sub_u32 s2, s2, 128\ns_cmp_ge_u32 s2, 672\ns_cbranch_scc1 {end}")
    a("s_load_dwordx4 s[4:7], s[0:1], 56\ns_load_dwordx2 s[8:9], s[0:1], 72\ns_load_dwordx2 s[10:11], s[0:1], 96\ns_waitcnt lgkmcnt(0)")
    a("v_lshrrev_b32 v1, 3, v0\nv_and_b32 v2, 7, v0")
    def body(pre, sp, rowbytes, nks, wsoff, ntb_cnt):
        a.srd(12, sp, 512 * 1792 * 2)
        a.srd(24, 10, 2 * MB, wsoff)
        a(f"s_mul_i32 s30, s28, {64*rowbytes}\ns_lshl_b32 s31, s29, 7\ns_add_u32 s30, s30, s31")
        a(f"v_mul_u32_u24 v3, {rowbytes}, v1\nv_lshl_add_u32 v3, v2, 4, v3\nv_add_u32 v3, s30, v3")
        a(f"buffer_load_dwordx4 v[10:13], v3, s[12:15], 0 offen")
        a(f"v_add_u32 v4, {32*rowbytes}, v3\nbuffer_load_dwordx4 v[14:17], v4, s[12:15], 0 offen")
        a("v_mul_u32_u24 v5, 1152, v2\nv_lshl_add_u32 v5, v1, 1, v5")
        a("s_waitcnt vmcnt(0)")
        for half in range(2):
            for e in range(8):
                r = 10 + 4 * half + e // 2
                op = "ds_write_b16" if e % 2 == 0 else "ds_write_b16_d16_hi"
                a(f"{op} v5, v{r} offset:{e*144 + half*64}")
        a("s_waitcnt lgkmcnt(0)\ns_barrier")
        a("v_and_b32 v6, 63, v0\nv_lshrrev_b32 v7, 6, v0")
        a("v_and_b32 v8, 15, v6\nv_lshrrev_b32 v9, 4, v6")
        a("v_lshl_add_u32 v8, v7, 4, v8\nv_mul_u32_u24 v8, 144, v8\nv_lshl_add_u32 v8, v9, 4, v8")
        a("ds_read_b128 v[10:13], v8\nds_read_b128 v[14:17], v8 offset:64")
        a(f"s_lshl_b32 s31, s29, 2\ns_mul_i32 s31, s31, {nks}\ns_lshl_b32 s30, s28, 1\ns_add_u32 s30, s30, s31\ns_lshl_b32 s30, s30, 10")
        a(f"v_mul_u32_u24 v9, {nks*1024}, v7\nv_lshl_add_u32 v9, v6, 4, v9\nv_add_u32 v9, s30, v9")
        a("s_waitcnt lgkmcnt(0)")
        a("buffer_store_dwordx4 v[10:13], v9, s[24:27], 0 offen\nbuffer_store_dwordx4 v[14:17], v9, s[24:27], 0 offen offset:1024")
        a(f"s_branch {end}")
    a("s_cmp_ge_u32 s2, 448\ns_cbranch_scc1 rp_d\ns_cmp_ge_u32 s2, 224\ns_cbranch_scc1 rp_u")
    a("s_mul_i32 s28, s2, 2341\ns_lshr_b32 s28, s28, 16\ns_mul_i32 s29, s28, 28\ns_sub_u32 s29, s2, s29")
    body("g", 4, 3584, 16, WS_WG, 28)
    a.lab("rp_u")
    a("s_sub_u32 s3, s2, 224\ns_mul_i32 s28, s3, 2341\ns_lshr_b32 s28, s28, 16\ns_mul_i32 s29, s28, 28\ns_sub_u32 s29, s3, s29")
    body("u", 6, 3584, 16, WS_WU, 28)
    a.lab("rp_d")
    a("s_sub_u32 s3, s2, 448\ns_lshr_b32 s28, s3, 3\ns_and_b32 s29, s3, 7")
    body("d", 8, 1024, 56, WS_WD, 8)
    a.lab(end)
    a("s_endpgm")
    return None

def k_conv(a):
    header(a, "conv_kernel")
    end = "cv_end"
    a(f"s_cmp_ge_u32 s2, 128\ns_cbranch_scc1 rp_entry")
    a("s_load_dwordx4 s[4:7], s[0:1], 32\ns_load_dwordx2 s[10:11], s[0:1], 96\ns_waitcnt lgkmcnt(0)")
    a("v_lshrrev_b32 v1, 6, v0\nv_and_b32 v2, 63, v0\ns_nop 0\nv_readfirstlane_b32 s28, v1")
    a("s_nop 3\ns_lshl_b32 s29, s2, 2\ns_add_u32 s29, s29, s28")
    a("s_lshl_b32 s30, s29, 12")
    a("s_add_u32 s12, s4, s30\ns_addc_u32 s13, s5, 0\ns_mov_b32 s14, 4096\ns_mov_b32 s15, 0x20000")
    a.srd(16, 10, 2 * MB, WS_KVT)
    a.srd(24, 10, 2 * MB, WS_Y2)
    a.srd(20, 6, 1024)
    a("s_lshl_b32 s31, s29, 1\nv_mov_b32 v3, s31\nbuffer_load_ushort v200, v3, s[20:23], 0 offen")
    a("s_mul_i32 s32, s28, 4608")
    a("v_lshlrev_b32 v3, 4, v2\nv_add_u32 v4, s30, v3\nv_add_u32 v5, s32, v3")
    for i in range(4):
        a(f"buffer_load_dwordx4 v[{10+4*i}:{13+4*i}], v4, s[16:19], 0 offen offset:{1024*i}")
        a(f"buffer_load_dwordx4 v[{30+4*i}:{33+4*i}], v3, s[12:15], 0 offen offset:{1024*i}")
    a("s_mul_i32 s33, s28, 4224\ns_add_u32 s33, s33, 34816")
    a("v_mov_b32 v26, 0\nv_mov_b32 v27, 0\nv_mov_b32 v28, 0\nv_mov_b32 v29, 0")
    a("s_waitcnt vmcnt(0)")
    for i in range(4):
        a(f"ds_write_b128 v5, v[{10+4*i}:{13+4*i}] offset:{1024*i}")
        a(f"v_add_u32 v9, s33, v3\nds_write_b128 v9, v[{30+4*i}:{33+4*i}] offset:{1024*i+64}")
    a("v_cmp_gt_u32 vcc, 32, v2\ns_and_saveexec_b64 s[34:35], vcc\nds_write_b128 v5, v[26:29] offset:4096\nv_cmp_gt_u32 vcc, 4, v2\ns_and_b64 exec, exec, vcc\nds_write_b128 v9, v[26:29]\nds_write_b128 v9, v[26:29] offset:4160\ns_mov_b64 exec, s[34:35]")
    a("v_and_b32 v6, 15, v2\nv_lshrrev_b32 v7, 4, v2")
    a("v_lshrrev_b32 v8, 1, v7\nv_and_b32 v9, 1, v7")
    a("v_lshlrev_b32 v10, 4, v8\nv_lshlrev_b32 v11, 3, v9\nv_sub_u32 v10, v10, v11\nv_add_u32 v10, v10, v6\nv_add_u32 v10, -7, v10")
    a("v_and_b32 v11, 1, v10\nv_lshlrev_b32 v11, 4, v11")
    a("v_and_b32 v12, -2, v10\nv_lshlrev_b32 v12, 1, v12")
    a("v_add_u32 v12, s33, v12\nv_add_u32 v12, 64, v12")
    for aa in range(8):
        a(f"v_add_u32 v{201+aa}, {aa*512}, v12")
    a("v_lshlrev_b32 v14, 4, v6\nv_sub_u32 v14, 2040, v14\nv_lshl_add_u32 v14, v8, 4, v14\nv_lshlrev_b32 v15, 3, v9\nv_sub_u32 v14, v14, v15")
    a("v_lshlrev_b32 v14, 1, v14\nv_add_u32 v14, s32, v14\nv_add_u32 v14, -3584, v14")
    ACC = 16
    AF = 48
    BF = 80
    RAW = 144
    for c in range(8):
        for r in range(4):
            a(f"v_mov_b32 v{ACC+4*c+r}, 0")
    def issue(b, st):
        for aa in range(8):
            p = 8 * aa + b
            R=RAW+6*aa
            a(f"ds_read2_b32 v[{R}:{R+1}], v{201+aa} offset0:{b*16} offset1:{b*16+1}")
            a(f"ds_read2_b32 v[{R+2}:{R+3}], v{201+aa} offset0:{b*16+2} offset1:{b*16+3}")
            a(f"ds_read_b32 v{R+4}, v{201+aa} offset:{b*64+16}")
        for m in range(8):
            w = 8 * m - b
            a(f"ds_read_b128 v[{BF+32*st+4*m}:{BF+32*st+4*m+3}], v14 offset:{(56-w)*64}")
    a("s_waitcnt lgkmcnt(0)")
    issue(0, 0)
    for b in range(8):
        st = b & 1
        a("s_waitcnt lgkmcnt(0)")
        for aa in range(8):
            for r in range(4):
                a(f"v_alignbit_b32 v{AF+4*aa+r}, v{RAW+6*aa+r+1}, v{RAW+6*aa+r}, v11")
        a("s_waitcnt lgkmcnt(0)")
        if b < 7:
            issue(b + 1, st ^ 1)
        else:
            a("s_nop 1")
        for c in range(8):
            for aa in range(c + 1):
                m = c - aa
                a(f"v_mfma_f32_16x16x32_bf16 v[{ACC+4*c}:{ACC+4*c+3}], v[{AF+4*aa}:{AF+4*aa+3}], v[{BF+32*st+4*m}:{BF+32*st+4*m+3}], v[{ACC+4*c}:{ACC+4*c+3}]")
    a("s_nop 7\ns_nop 1")
    a("v_lshlrev_b32 v200, 16, v200")
    a("v_lshlrev_b32 v6, 4, v6\nv_lshl_add_u32 v6, v7, 2, v6")
    a("v_lshlrev_b32 v8, 1, v6\nv_sub_u32 v8, 4088, v8\nv_add_u32 v8, s32, v8\nv_add_u32 v8, -3584, v8")
    a("v_lshlrev_b32 v9, 3, v6\nv_lshl_add_u32 v9, v1, 1, v9\nv_add_u32 v9, 18432, v9")
    for c in range(8):
        a(f"ds_read_b64 v[198:199], v8 offset:{(7-c)*512}")
        a("s_waitcnt lgkmcnt(0)")
        a("v_and_b32 v192, 0xffff0000, v199\nv_lshlrev_b32 v193, 16, v199\nv_and_b32 v194, 0xffff0000, v198\nv_lshlrev_b32 v195, 16, v198")
        for r in range(4):
            a(f"v_mul_f32 v{192+r}, v{192+r}, v200")
        a.rnd2(192, 193, 196); a.rnd2(194, 195, 196)
        a.rnd2(ACC + 4 * c, ACC + 4 * c + 1, 196); a.rnd2(ACC + 4 * c + 2, ACC + 4 * c + 3, 196)
        for r in range(4):
            a(f"v_add_f32 v{192+r}, v{192+r}, v{ACC+4*c+r}")
        a("v_cvt_pk_bf16_f32 v196, v192, v193\nv_cvt_pk_bf16_f32 v197, v194, v195")
        a(f"ds_write_b16 v9, v196 offset:{c*2048}\nds_write_b16_d16_hi v9, v196 offset:{c*2048+8}")
        a(f"ds_write_b16 v9, v197 offset:{c*2048+16}\nds_write_b16_d16_hi v9, v197 offset:{c*2048+24}")
    a("s_waitcnt lgkmcnt(0)\ns_barrier")
    a("v_lshlrev_b32 v3, 3, v0\nv_lshlrev_b32 v4, 10, v0\ns_lshl_b32 s30, s2, 3\nv_add_u32 v4, s30, v4")
    for i in range(8):
        a(f"ds_read_b64 v[{10+2*i}:{11+2*i}], v3 offset:{18432+2048*i}")
    a("s_waitcnt lgkmcnt(0)")
    for i in range(8):
        a(f"v_add_u32 v5, {i*262144}, v4\nbuffer_store_dwordx2 v[{10+2*i}:{11+2*i}], v5, s[24:27], 0 offen")
    a.lab(end)
    a("s_endpgm")
    k_repack(a)
    return desc("conv_kernel", 212), 34816 + 4*4224

def k_ln(a):
    header(a, "ln_kernel")
    end = "ln_end"
    a(f"s_cmp_ge_u32 s2, 128\ns_cbranch_scc1 {end}")
    a("s_load_dwordx2 s[4:5], s[0:1], 0\ns_load_dwordx2 s[10:11], s[0:1], 96\ns_waitcnt lgkmcnt(0)")
    a.srd(12, 4, 2 * MB); a.srd(16, 10, 2 * MB, WS_Y2); a.srd(20, 10, 2 * MB, WS_H); a.srd(24, 10, 2 * MB, WS_N2)
    a("v_lshrrev_b32 v1, 4, v0\nv_and_b32 v2, 15, v0\ns_lshl_b32 s28, s2, 14")
    a("v_lshlrev_b32 v3, 10, v1\nv_lshl_add_u32 v3, v2, 4, v3\nv_add_u32 v3, s28, v3")
    for j in range(4):
        a(f"buffer_load_dwordx4 v[{4+4*j}:{7+4*j}], v3, s[12:15], 0 offen offset:{256*j}")
        a(f"buffer_load_dwordx4 v[{20+4*j}:{23+4*j}], v3, s[16:19], 0 offen offset:{256*j}")
    a("s_waitcnt vmcnt(0)")
    X = 40
    for i in range(16):
        a.unpk(X + 2 * i, X + 2 * i + 1, 4 + i)
    def reduce16(r, t):
        for m in (1, 2, 4, 8):
            a(f"ds_swizzle_b32 v{t}, v{r} offset:{(m<<10)|0x1f}\ns_waitcnt lgkmcnt(0)\nv_add_f32 v{r}, v{r}, v{t}")
    def ln(src, dst):
        a(f"v_add_f32 v36, v{src}, v{src+1}")
        for i in range(2, 32):
            a(f"v_add_f32 v36, v36, v{src+i}")
        reduce16(36, 37)
        a("v_mul_f32 v36, 0x3b000000, v36")
        a(f"v_sub_f32 v37, v{src}, v36\nv_mul_f32 v38, v37, v37")
        for i in range(1, 32):
            a(f"v_sub_f32 v37, v{src+i}, v36\nv_fmac_f32 v38, v37, v37")
        reduce16(38, 37)
        a("v_mul_f32 v38, 0x3b000000, v38")
        a.rnd2(36, 38, 37)
        a("v_add_f32 v38, 0x3727c5ac, v38\nv_mov_b32 v39, 0")
        a.rnd2(38, 39, 37)
        a("v_sqrt_f32 v38, v38\ns_nop 0")
        a.rnd2(38, 39, 37)
        a("v_rcp_f32 v38, v38\ns_nop 0")
        for i in range(0, 32, 2):
            a(f"v_sub_f32 v{dst+i}, v{src+i}, v36\nv_sub_f32 v{dst+i+1}, v{src+i+1}, v36")
            a.rnd2(dst + i, dst + i + 1, 37)
            a(f"v_mul_f32 v{dst+i}, v{dst+i}, v38\nv_mul_f32 v{dst+i+1}, v{dst+i+1}, v38")
            a.rnd2(dst + i, dst + i + 1, 37)
    Q = 72
    ln(X, Q)
    H = 104
    for i in range(16):
        a.unpk(H + 2 * i, H + 2 * i + 1, 20 + i)
        a(f"v_mul_f32 v{H+2*i}, v{H+2*i}, v{Q+2*i}\nv_mul_f32 v{H+2*i+1}, v{H+2*i+1}, v{Q+2*i+1}")
        a.rnd2(H + 2 * i, H + 2 * i + 1, 37)
        a(f"v_add_f32 v{H+2*i}, v{H+2*i}, v{X+2*i}\nv_add_f32 v{H+2*i+1}, v{H+2*i+1}, v{X+2*i+1}")
        a(f"v_cvt_pk_bf16_f32 v{4+i}, v{H+2*i}, v{H+2*i+1}")
        a.unpk(H + 2 * i, H + 2 * i + 1, 4 + i)
    for j in range(4):
        a(f"buffer_store_dwordx4 v[{4+4*j}:{7+4*j}], v3, s[20:23], 0 offen offset:{256*j}")
    ln(H, Q)
    for i in range(16):
        a(f"v_cvt_pk_bf16_f32 v{20+i}, v{Q+2*i}, v{Q+2*i+1}")
    a("v_and_b32 v36, 3, v2\nv_lshrrev_b32 v37, 2, v2\nv_lshlrev_b32 v36, 8, v36\nv_lshl_add_u32 v36, v37, 10, v36\nv_lshl_add_u32 v36, v1, 4, v36\nv_add_u32 v36, s28, v36")
    for j in range(4):
        a(f"s_mov_b32 s29, {4096*j}\nbuffer_store_dwordx4 v[{20+4*j}:{23+4*j}], v36, s[24:27], s29 offen")
    a.lab(end)
    a("s_endpgm")
    return desc("ln_kernel", 136), 0

def k_g1(a):
    header(a, "g1_kernel")
    end = "g1_end"
    a(f"s_cmp_ge_u32 s2, 224\ns_cbranch_scc1 {end}")
    a("s_load_dwordx2 s[10:11], s[0:1], 96\ns_waitcnt lgkmcnt(0)")
    a.srd(12, 10, 2 * MB, WS_N2); a.srd(16, 10, 2 * MB, WS_WG); a.srd(20, 10, 2 * MB, WS_WU); a.srd(24, 10, 8 * MB, WS_HH)
    a("s_and_b32 s28, s2, 15\ns_lshr_b32 s29, s2, 4")
    a("v_lshrrev_b32 v1, 6, v0\nv_and_b32 v2, 63, v0\nv_and_b32 v3, 15, v2\nv_lshrrev_b32 v4, 4, v2")
    a("v_lshrrev_b32 v5, 1, v1\nv_and_b32 v6, 1, v1")
    a("v_lshlrev_b32 v7, 16, v5\nv_lshl_add_u32 v7, v2, 4, v7\ns_lshl_b32 s30, s28, 17\nv_add_u32 v7, s30, v7")
    a("v_lshlrev_b32 v8, 16, v6\nv_lshl_add_u32 v8, v2, 4, v8\ns_lshl_b32 s30, s29, 17\nv_add_u32 v8, s30, v8")
    NS = 4; F = 16
    for r in range(128):
        a(f"v_accvgpr_write_b32 a{r}, 0")
    for i in range(1, 4):
        a(f"v_add_u32 v{9+i}, {i*16384}, v7")
    for j in range(1, 4):
        a(f"v_add_u32 v{12+j}, {j*16384}, v8")
    def issue(ks):
        o = F + 48 * (ks % NS)
        a(f"s_mov_b32 s31, {ks*1024}")
        for i in range(4):
            a(f"buffer_load_dwordx4 v[{o+4*i}:{o+4*i+3}], v{9+i if i else 7}, s[12:15], s31 offen")
        for j in range(4):
            a(f"buffer_load_dwordx4 v[{o+16+4*j}:{o+19+4*j}], v{12+j if j else 8}, s[16:19], s31 offen")
        for j in range(4):
            a(f"buffer_load_dwordx4 v[{o+32+4*j}:{o+35+4*j}], v{12+j if j else 8}, s[20:23], s31 offen")
    for ks in range(NS - 1):
        issue(ks)
    for ks in range(16):
        if ks + NS - 1 < 16:
            issue(ks + NS - 1)
        a(f"s_waitcnt vmcnt({12*min(NS-1, 15-ks)})")
        o = F + 48 * (ks % NS)
        for i in range(4):
            for j in range(8):
                t = 4 * (8 * i + j)
                a(f"v_mfma_f32_16x16x32_bf16 a[{t}:{t+3}], v[{o+16+4*j}:{o+19+4*j}], v[{o+4*i}:{o+4*i+3}], a[{t}:{t+3}]")
    a("s_nop 7\ns_nop 1")
    a(f"v_mul_u32_u24 v7, {4*56*1024}, v5\nv_lshl_add_u32 v7, v6, 11, v7\nv_lshl_add_u32 v7, v3, 4, v7\nv_lshrrev_b32 v8, 1, v4\nv_lshl_add_u32 v7, v8, 8, v7\nv_and_b32 v8, 1, v4\nv_lshl_add_u32 v7, v8, 3, v7")
    a(f"s_mul_i32 s30, s28, {8*56*1024}\ns_lshl_b32 s31, s29, 12\ns_add_u32 s30, s30, s31\nv_add_u32 v7, s30, v7")
    for i in range(4):
        for j in range(4):
            g = 20; u = 24
            for r in range(4):
                a(f"v_accvgpr_read_b32 v{g+r}, a{4*(8*i+j)+r}\nv_accvgpr_read_b32 v{u+r}, a{4*(8*i+j)+16+r}")
            a.rnd2(g, g + 1, 9); a.rnd2(g + 2, g + 3, 9); a.rnd2(u, u + 1, 9); a.rnd2(u + 2, u + 3, 9)
            for r in range(4):
                a(f"v_max_f32 v{g+r}, 0, v{g+r}\nv_mul_f32 v{g+r}, v{g+r}, v{u+r}")
            d = 28 + 2 * ((4 * i + j) % 8)
            a(f"v_cvt_pk_bf16_f32 v{d}, v{g}, v{g+1}\nv_cvt_pk_bf16_f32 v{d+1}, v{g+2}, v{g+3}")
            a(f"buffer_store_dwordx2 v[{d}:{d+1}], v7, s[24:27], 0 offen offset:{j*512}")
        if i < 3:
            a(f"v_add_u32 v7, {56*1024}, v7")
    a.lab(end)
    a("s_endpgm")
    return desc("g1_kernel", 208+128, accum=208), 0

def k_g2(a):
    header(a, "g2_kernel")
    end = "g2_end"
    a(f"s_cmp_ge_u32 s2, 256\ns_cbranch_scc1 {end}")
    a("s_load_dwordx2 s[8:9], s[0:1], 80\ns_load_dwordx2 s[10:11], s[0:1], 96\ns_waitcnt lgkmcnt(0)")
    a.srd(12, 10, 8 * MB, WS_HH); a.srd(16, 10, 2 * MB, WS_WD); a.srd(20, 10, 2 * MB, WS_H); a.srd(24, 8, 2 * MB)
    a("s_and_b32 s28, s2, 31\ns_lshr_b32 s29, s2, 5")
    a("v_lshrrev_b32 v1, 6, v0\nv_and_b32 v2, 63, v0\nv_and_b32 v3, 15, v2\nv_lshrrev_b32 v4, 4, v2")
    a("v_lshrrev_b32 v5, 1, v1\nv_and_b32 v6, 1, v1")
    a(f"v_mul_u32_u24 v7, {2*56*1024}, v5\nv_lshl_add_u32 v7, v2, 4, v7\ns_mul_i32 s30, s28, {4*56*1024}\nv_add_u32 v7, s30, v7\nv_add_u32 v9, {56*1024}, v7")
    a(f"v_mul_u32_u24 v8, {2*56*1024}, v6\nv_lshl_add_u32 v8, v2, 4, v8\ns_mul_i32 s30, s29, {4*56*1024}\nv_add_u32 v8, s30, v8\nv_add_u32 v10, {56*1024}, v8")
    ACC = 16; F = 32; NS = 8
    for r in range(16):
        a(f"v_mov_b32 v{ACC+r}, 0")
    def issue(ks):
        o = F + 16 * (ks % NS)
        a(f"s_mov_b32 s31, {ks*1024}")
        a(f"buffer_load_dwordx4 v[{o}:{o+3}], v7, s[12:15], s31 offen\nbuffer_load_dwordx4 v[{o+4}:{o+7}], v9, s[12:15], s31 offen")
        a(f"buffer_load_dwordx4 v[{o+8}:{o+11}], v8, s[16:19], s31 offen\nbuffer_load_dwordx4 v[{o+12}:{o+15}], v10, s[16:19], s31 offen")
    for ks in range(NS - 1):
        issue(ks)
    for ks in range(56):
        if ks + NS - 1 < 56:
            issue(ks + NS - 1)
        a(f"s_waitcnt vmcnt({4*min(NS-1, 55-ks)})")
        o = F + 16 * (ks % NS)
        for i in range(2):
            for j in range(2):
                t = ACC + 4 * (2 * i + j)
                a(f"v_mfma_f32_16x16x32_bf16 v[{t}:{t+3}], v[{o+8+4*j}:{o+11+4*j}], v[{o+4*i}:{o+3+4*i}], v[{t}:{t+3}]")
    a("s_nop 7\ns_nop 1\ns_mov_b32 s34, 0\ns_mov_b32 s35, 16384")
    a("v_lshl_add_u32 v7, v5, 5, v3\ns_lshl_b32 s30, s28, 6\nv_add_u32 v7, s30, v7\nv_lshlrev_b32 v7, 10, v7")
    a("v_lshlrev_b32 v8, 6, v6\nv_lshl_add_u32 v8, v4, 3, v8\ns_lshl_b32 s30, s29, 7\nv_add_u32 v8, s30, v8\nv_add_u32 v7, v7, v8")
    for i in range(2):
        for j in range(2):
            a(f"buffer_load_dwordx2 v[{40+4*i+2*j}:{41+4*i+2*j}], v7, s[20:23], s{34+i} offen offset:{j*32}")
    a("s_waitcnt vmcnt(0)")
    for i in range(2):
        for j in range(2):
            t = ACC + 4 * (2 * i + j); hr = 40 + 4 * i + 2 * j
            a.rnd2(t, t + 1, 9); a.rnd2(t + 2, t + 3, 9)
            a.unpk(50, 51, hr); a.unpk(52, 53, hr + 1)
            for r in range(4):
                a(f"v_add_f32 v{t+r}, v{t+r}, v{50+r}")
            a(f"v_cvt_pk_bf16_f32 v{hr}, v{t}, v{t+1}\nv_cvt_pk_bf16_f32 v{hr+1}, v{t+2}, v{t+3}")
            a(f"buffer_store_dwordx2 v[{hr}:{hr+1}], v7, s[24:27], s{34+i} offen offset:{j*32}")
    a.lab(end)
    a("s_endpgm")
    return desc("g2_kernel", 160), 0

def main():
    a = A()
    ks = [("kv_kernel", 256, k_kv), ("conv_kernel", 800, k_conv),
          ("ln_kernel", 128, k_ln), ("g1_kernel", 224, k_g1), ("g2_kernel", 256, k_g2)]
    descs = []; heads = []
    for nm, grid, fn in ks:
        d, lds = fn(a)
        descs.append(d)
        heads.append(f"; @launch kernel={nm} grid=({grid},1,1) block=(256,1,1) lds={lds}")
    src = "\n".join(heads) + '\n.amdgcn_target "amdgcn-amd-amdhsa--gfx950"\n.text\n' + "\n".join(a.l) + '\n.section .rodata,"a"\n' + "".join(descs)
    open(sys.argv[1] if len(sys.argv) > 1 else f"cdna_kernels/{NAME}.s", "w").write(src)
main()
```
